```python
import torch

def _softmax(x, axis=-1):
    return torch.softmax(x, dim=axis)
def _gelu(x):
    return torch.nn.functional.gelu(x, approximate="tanh")
def _silu(x):
    return torch.nn.functional.silu(x)
def _sigmoid(x):
    return torch.sigmoid(x)
def _layernorm(x, axis=-1, eps=1e-5):
    m = x.mean(dim=axis, keepdim=True)
    v = x.var(dim=axis, keepdim=True, unbiased=False)
    return (x - m) / torch.sqrt(v + eps)
def _scatter_add(tgt, idx, src, axis=0):
    return tgt.clone().index_add_(axis, idx, src)
def _segment_sum(src, seg, n):
    out = torch.zeros((n,) + src.shape[1:], dtype=src.dtype)
    return out.index_add_(0, seg, src)
def _pad(x, pw):
    flat = tuple(v for pair in reversed(pw) for v in pair)
    return torch.nn.functional.pad(x, flat)

kernel_name = 'recurrent_scan__mha_block_cached__swiglu_ffn__decode'

def setup_inputs():

    _w = (lambda a: (lambda t: t.to(torch.bfloat16) if t.is_floating_point() else t)(torch.as_tensor(a)))
    def _A_setup():
        B, Sq, D = 2, 1, 1024
        H, Sk, Dh = 32, 16384, 128
        return {
            "x": _w((lambda *s: torch.randn(*s, dtype=torch.bfloat16) * 0.05)(B, Sq, D)),
            "k_cache": _w((lambda *s: torch.randn(*s, dtype=torch.bfloat16) * 1.6)(B, H, Sk, Dh)),
            "v_cache": _w((lambda *s: torch.randn(*s, dtype=torch.bfloat16) * 0.2)(B, H, Sk, Dh)),
            "wq": _w((lambda *s: torch.randn(*s, dtype=torch.bfloat16) * 1.6)(D, H * Dh) * (D ** -0.5)),
            "wo": _w((lambda *s: torch.randn(*s, dtype=torch.bfloat16) * 0.2)(H * Dh, D) * ((H * Dh) ** -0.5)),
        }
    _A_in = _A_setup()

    def _B_setup():
        B, S, D, F = 2, 1, 1024, 3584
        return {
            "x": _w((lambda *s: torch.randn(*s, dtype=torch.bfloat16) * 0.05)(B, S, D)),
            "w_gate": _w((lambda *s: torch.randn(*s, dtype=torch.bfloat16) * 0.1)(D, F)),
            "w_up": _w((lambda *s: torch.randn(*s, dtype=torch.bfloat16) * 0.1)(D, F)),
            "w_down": _w((lambda *s: torch.randn(*s, dtype=torch.bfloat16) * 0.1)(F, D)),
        }
    _B_in = _B_setup()

    return {
        "A_x": _A_in["x"],
        "A_k_cache": _A_in["k_cache"],
        "A_v_cache": _A_in["v_cache"],
        "A_wq": _A_in["wq"],
        "A_wo": _A_in["wo"],
        "B_x": _B_in["x"],
        "B_w_gate": _B_in["w_gate"],
        "B_w_up": _B_in["w_up"],
        "B_w_down": _B_in["w_down"],
    }

def reference(A_x, A_k_cache, A_v_cache, A_wq, A_wo, B_x, B_w_gate, B_w_up, B_w_down):
    def _A_ref(x, k_cache, v_cache, wq, wo):
        B, Sq, D = x.shape
        H, Dh = 32, 128
        q = (lambda x, *d: x.permute(*d))((x @ wq).reshape(B, Sq, H, Dh), 0, 2, 1, 3)
        scores = torch.einsum("bhqd,bhkd->bhqk", q, k_cache) * (Dh ** -0.5)
        p = _softmax(scores, axis=-1)
        o = torch.einsum("bhqk,bhkd->bhqd", p, v_cache)
        return (lambda x, *d: x.permute(*d))(o, 0, 2, 1, 3).reshape(B, Sq, H * Dh) @ wo

    def _B_ref(x, w_gate, w_up, w_down):
        g = _silu(x @ w_gate)
        u = x @ w_up
        return (g * u) @ w_down

    x = A_x
    xn = _layernorm(x, axis=-1)
    s = _A_ref(xn, A_k_cache, A_v_cache, A_wq, A_wo)
    g = _silu(_B_ref(xn, B_w_gate, B_w_up, B_w_down))
    return x + s * g
```

```python
import re


class Asm:
    def __init__(self):
        self.lines = []

    def __call__(self, s=""):
        for ln in s.split("\n"):
            self.lines.append(ln)

    def label(self, name):
        self.lines.append(name + ":")

    def c(self, text):
        self.lines.append("    ; " + text)

    def i(self, text):
        self.lines.append("    " + text)

    def nop(self, n):
        while n > 0:
            k = min(n, 16)
            self.i("s_nop %d" % (k - 1))
            n -= k

    def text(self):
        return "\n".join(self.lines) + "\n"


class VM:
    def __init__(self, asm):
        self.asm = asm
        self.q = []

    def issue(self, tag):
        self.q.append(tag)

    def wait(self, tag, extra=""):
        idx = None
        for i, t in enumerate(self.q):
            if t == tag:
                idx = i
        if idx is None:
            return
        n = len(self.q) - 1 - idx
        assert n <= 63, "vmcnt overflow"
        self.asm.i("s_waitcnt vmcnt(%d)%s" % (n, extra))
        self.q = self.q[idx + 1:]

    def wait_all(self, extra=""):
        self.asm.i("s_waitcnt vmcnt(0)%s" % extra)
        self.q = []

    def state(self):
        return list(self.q)


_reg_re = re.compile(r"\b([vsa])(\d+)\b|\b([vsa])\[(\d+):(\d+)\]|\b(vcc|exec|m0|scc)\b")


def _regs(tok):
    out = []
    for m in _reg_re.finditer(tok):
        if m.group(1):
            out.append((m.group(1), int(m.group(2))))
        elif m.group(3):
            for k in range(int(m.group(4)), int(m.group(5)) + 1):
                out.append((m.group(3), k))
        else:
            out.append((m.group(6), 0))
    return out


TRANS = ("v_exp_f32", "v_log_f32", "v_rcp_f32", "v_rsq_f32", "v_sqrt_f32", "v_sin_f32", "v_cos_f32")


def _parse(line):
    s = line.split(";")[0].strip()
    if not s or s.endswith(":") or s.startswith("."):
        return None
    parts = s.split(None, 1)
    op = parts[0]
    rest = parts[1] if len(parts) > 1 else ""
    ops = []
    depth = 0
    cur = ""
    for ch in rest:
        if ch == "[":
            depth += 1
        if ch == "]":
            depth -= 1
        if ch == "," and depth == 0:
            ops.append(cur.strip())
            cur = ""
        else:
            cur += ch
    if cur.strip():
        ops.append(cur.strip())
    return op, ops, s


def _classify(op, ops, s):
    d = dict(op=op, kind="other", w=[], r=[], states=1, dpp=False, text=s)
    if op == "s_nop":
        d["states"] = int(ops[0], 0) + 1
        d["kind"] = "nop"
        return d
    if op.startswith("v_mfma"):
        d["kind"] = "mfma"
        d["w"] = _regs(ops[0])
        d["A"] = _regs(ops[1])
        d["B"] = _regs(ops[2])
        d["C"] = _regs(ops[3])
        d["r"] = d["A"] + d["B"] + d["C"]
        d["passes"] = 4 if "16x16" in op else 8
        return d
    if op.startswith("v_"):
        d["kind"] = "valu"
        base = op.replace("_dpp", "").replace("_e32", "").replace("_e64", "").replace("_sdwa", "")
        d["base"] = base
        d["dpp"] = ("_dpp" in op) or ("row_" in s) or ("quad_perm" in s)
        last = ops[-1].split(" ")[0] if ops else ""
        o = ops[:-1] + [last]
        if base.startswith("v_cmp"):
            d["w"] = _regs(o[0])
            d["r"] = sum((_regs(x) for x in o[1:]), [])
        elif base in ("v_readlane_b32", "v_readfirstlane_b32"):
            d["w"] = _regs(o[0])
            d["r"] = sum((_regs(x) for x in o[1:]), [])
            d["kind"] = "readlane"
        elif base.startswith("v_permlane"):
            d["w"] = _regs(o[0]) + _regs(o[1])
            d["r"] = _regs(o[0]) + _regs(o[1])
            d["kind"] = "permlane"
        elif base in ("v_add_co_u32", "v_sub_co_u32", "v_addc_co_u32", "v_div_scale_f32"):
            d["w"] = _regs(o[0]) + _regs(o[1])
            d["r"] = sum((_regs(x) for x in o[2:]), [])
        else:
            d["w"] = _regs(o[0])
            d["r"] = sum((_regs(x) for x in o[1:]), [])
            if base in ("v_fmac_f32", "v_dot2c_f32_bf16") or d["dpp"]:
                d["r"] += _regs(o[0])
            if base == "v_cndmask_b32" and len(o) == 3:
                d["r"].append(("vcc", 0))
        if base in TRANS:
            d["trans"] = True
        if base.startswith("v_dot"):
            d["dot"] = True
        return d
    if op.startswith("buffer_") or op.startswith("global_"):
        d["kind"] = "vmem"
        isload = "load" in op
        toks = []
        for x in ops:
            toks.append(x.split(" ")[0])
        if op.startswith("buffer_"):
            if op in ("buffer_inv", "buffer_wbl2"):
                return d
            data = _regs(toks[0])
            rest = sum((_regs(x) for x in toks[1:]), [])
        else:
            if isload:
                data = _regs(toks[0])
                rest = sum((_regs(x) for x in toks[1:]), [])
            else:
                data = _regs(toks[1])
                rest = _regs(toks[0]) + sum((_regs(x) for x in toks[2:]), [])
        if isload:
            d["w"] = data
            d["r"] = rest
        else:
            d["r"] = data + rest
            d["sdata"] = data
            d["wide"] = op.endswith("x4") or op.endswith("x3")
        return d
    if op.startswith("ds_"):
        d["kind"] = "ds"
        toks = [x.split(" ")[0] for x in ops]
        if op.startswith("ds_read") or op.startswith("ds_bpermute") or op.startswith("ds_swizzle"):
            d["w"] = _regs(toks[0])
            d["r"] = sum((_regs(x) for x in toks[1:]), [])
        else:
            d["r"] = sum((_regs(x) for x in toks), [])
        return d
    if op.startswith("s_"):
        d["kind"] = "salu"
        toks = [x.split(" ")[0] for x in ops]
        if op.startswith("s_cmp") or op.startswith("s_cbranch") or op in ("s_branch", "s_waitcnt", "s_barrier", "s_endpgm", "s_sleep", "s_setprio"):
            d["r"] = sum((_regs(x) for x in toks), [])
        else:
            d["w"] = _regs(toks[0]) if toks else []
            d["r"] = sum((_regs(x) for x in toks[1:]), [])
        return d
    return d


def check_hazards(lines, window=24):
    ins = []
    for n, ln in enumerate(lines):
        p = _parse(ln)
        if p is None:
            continue
        d = _classify(*p)
        d["line"] = n + 1
        ins.append(d)
    probs = []
    for i, c in enumerate(ins):
        dist = 0
        for j in range(i - 1, max(-1, i - window), -1):
            p = ins[j]
            need = 0
            why = ""
            pw = set(p["w"])
            cr = set(c["r"])
            cw = set(c["w"])
            pvalu = p["kind"] in ("valu", "readlane", "permlane")
            vw = set(x for x in pw if x[0] in "va")
            sw = set(x for x in pw if x[0] == "s" or x[0] == "vcc")
            if pvalu:
                if c["kind"] == "valu" and c["dpp"] and vw & cr:
                    need, why = max(need, 2), "VALU->DPP"
                if c["kind"] == "readlane" and vw & cr:
                    need, why = max(need, 1), "VALU->readlane"
                if c["kind"] == "permlane" and vw & cr:
                    need, why = max(need, 2), "VALU->permlane"
                if c["kind"] == "mfma" and vw & cr:
                    need, why = max(need, 2), "VALU->MFMA"
                if c["kind"] in ("valu", "readlane", "permlane") and sw & cr:
                    need, why = max(need, 2), "VALU sgpr->VALU"
                    if c["kind"] == "readlane":
                        need = 4
                if c["kind"] == "vmem" and sw & cr:
                    need, why = max(need, 5), "VALU sgpr->VMEM"
                if c["kind"] == "salu" and sw & cr:
                    need, why = max(need, 1), "VALU sgpr->SALU (pad)"
                if p.get("trans") and c["kind"] in ("valu", "mfma", "permlane", "readlane") and not c.get("trans") and vw & cr:
                    need, why = max(need, 1), "trans->VALU"
                if p.get("dot") and (vw & (cr | cw)) and c["kind"] != "salu":
                    if c.get("dot") and c.get("base") == p.get("base"):
                        pass
                    else:
                        need, why = max(need, 3), "dot2->other"
            if p["kind"] == "mfma":
                D = set(p["w"])
                xd = 8 if p["passes"] == 4 else 12
                if c["kind"] == "mfma":
                    if D & (set(c["A"]) | set(c["B"])):
                        need, why = max(need, xd), "MFMA->MFMA A/B"
                    if D & set(c["C"]) and set(c["C"]) != D:
                        need, why = max(need, 6 if p["passes"] == 4 else 10), "MFMA->MFMA C overlap"
                elif c["kind"] in ("valu", "readlane", "permlane", "vmem", "ds") and (D & (cr | cw)):
                    need, why = max(need, xd), "MFMA D->read/write"
                if c["kind"] in ("valu", "permlane") and (set(p["C"]) & cw):
                    need, why = max(need, 3 if p["passes"] == 4 else 7), "MFMA C WAR"
            if p["kind"] == "vmem" and p.get("wide") and c["kind"] in ("valu", "permlane", "readlane", "mfma") and (set(p["sdata"]) & cw):
                need, why = max(need, 2), "wide store WAR"
            if need > dist:
                probs.append("line %d: '%s' needs %d wait states after line %d '%s' (%s), has %d"
                             % (c["line"], c["text"], need, p["line"], p["text"], why, dist))
            dist += p["states"]
            if dist >= 20:
                break
    return probs
```

```python
import sys
import argparse
from asmlib import Asm, VM, check_hazards

NAME = "recurrent_scan__mha_block_cached__swiglu_ffn__decode"

HEADER = """; Kernarg layout for this problem (96 bytes, ptrs only, base s[0:1]):
"""

WS_HDR = 4096
A_OFF = 0
B_OFF = 2048
C_OFF = 6144
DW_OFF = 8192
DF_OFF = 10240

XS0 = 0
XS1 = 1024
XS2 = 2048
QL = 3072
ST1 = 3328
ST2 = 3360
MLL = 3392
FIN = 3456
RED_A = 4096
RED_B = 12288
RED_C = 20480
LDS_BYTES = 28672

LOG2E = 0x3FB8AA3B
SCALE = 0x3DB504F3
EPS = 0x3727C5AC

sW, sG, sS, sB_, sQT = 3, 4, 5, 6, 7
SRD_X, SRD_K, SRD_V, SRD_WQ, SRD_WG, SRD_WU, SRD_WO, SRD_WD, SRD_OUT, SRD_WS, SRD_DBG = 8, 12, 16, 20, 24, 28, 32, 36, 40, 44, 48
sT0, sT1 = 52, 53
sKO, sVO, sCNT = 54, 55, 56
sT = 57
sAREA, sGRP = 64, 65
sSPIN = 66
sX0 = 68
sSTAMP = 92
sOK = 98


def srd(n):
    return "s[%d:%d]" % (n, n + 3)


vTID, vL, vRING, vT8, vT7, vT2, vXSR, vREDW, vREDR, vXSW, vXFIN = range(0, 11)
vM, vLS, vPP = 11, 12, 13
vt = 14
vMASK = 32
vQ = 36
vACC = 40
vB0 = 44
vB1 = 48
vP = 52
vR = 68
vTQ, vTG, vTU = 132, 148, 164
vG = 180
vU = 212
NVGPR = 244


def v(n, k=1):
    return "v%d" % n if k == 1 else "v[%d:%d]" % (n, n + k - 1)


def s(n, k=1):
    return "s%d" % n if k == 1 else "s[%d:%d]" % (n, n + k - 1)


class Gen:
    def __init__(self, P1=3, P2=3, D=3, G=4, AREA=16384 + 512, diag=False, spin=200000, sleep=2,
                 tile_at=13):
        self.P1, self.P2, self.D, self.G = P1, P2, D, G
        self.AREA = AREA
        self.diag = diag
        self.spin = spin
        self.sleep = sleep
        self.tile_at = tile_at
        self.a = Asm()
        self.vm = VM(self.a)
        self.ws_bytes = WS_HDR + 256 * AREA
        self.nlab = 0
        self.nstamp = 0

    def lab(self, base):
        self.nlab += 1
        return "L_%s_%d" % (base, self.nlab)

    def stamp(self, k):
        if not self.diag:
            return
        a = self.a
        a.i("s_memrealtime s[%d:%d]" % (sSTAMP + 0, sSTAMP + 1))
        a.i("s_waitcnt lgkmcnt(0)")
        a.i("v_writelane_b32 %s, s%d, %d" % (v(vU + 31), sSTAMP, k))

    def allreduce(self, op, r, t):
        a = self.a
        for n in (8, 4, 2, 1):
            a.nop(2)
            a.i("v_%s_f32_dpp %s, %s, %s row_ror:%d row_mask:0xf bank_mask:0xf" % (op, v(r), v(r), v(r), n))
        for sw in ("16", "32"):
            a.i("v_mov_b32 %s, %s" % (v(t), v(r)))
            a.nop(2)
            a.i("v_permlane%s_swap_b32 %s, %s" % (sw, v(r), v(t)))
            a.nop(1)
            a.i("v_%s_f32 %s, %s, %s" % (op, v(r), v(r), v(t)))

    def bf16r(self, dst, src):
        a = self.a
        a.i("v_cvt_pk_bf16_f32 %s, %s, %s" % (v(dst), v(src), v(src)))
        a.i("v_and_b32 %s, 0xffff0000, %s" % (v(dst), v(dst)))

    def tile_loads(self, T, srdn, voff, rowstride, soff_sgpr, tag, pol="nt"):
        a = self.a
        for i in range(4):
            if i == 0:
                so = s(soff_sgpr)
            else:
                a.i("s_add_u32 s%d, s%d, %d" % (sT + 6, soff_sgpr, 4 * i * rowstride))
                so = s(sT + 6)
            a.i("buffer_load_dwordx4 %s, %s, %s, %s offen %s" % (v(T + 4 * i, 4), v(voff), srd(srdn), so, pol))
            self.vm.issue(tag)

    def gemv(self, T, xsbase, redbase):
        a = self.a
        X = vU
        ACC = vU + 4
        a.i("ds_read_b128 %s, %s offset:%d" % (v(X, 4), v(vXSR), xsbase))
        a.i("s_waitcnt lgkmcnt(0)")
        Bs = (vB0, vB1)
        for d in range(4):
            a.i("v_and_b32 %s, %s, %s" % (v(Bs[0] + d), v(X), v(vMASK + d)))
        for i in range(4):
            if i < 3:
                for d in range(4):
                    a.i("v_and_b32 %s, %s, %s" % (v(Bs[(i + 1) & 1] + d), v(X + i + 1), v(vMASK + d)))
            else:
                a.nop(2)
            if i == 0:
                a.nop(0)
            a.i("v_mfma_f32_16x16x32_bf16 %s, %s, %s, %s" % (v(ACC, 4), v(T + 4 * i, 4), v(Bs[i & 1], 4), "0" if i == 0 else v(ACC, 4)))
        a.nop(8)
        a.i("ds_write_b128 %s, %s offset:%d" % (v(vREDW), v(ACC, 4), redbase))

    def reduce8(self, addr, out0, out1, tmp):
        a = self.a
        a1 = tmp + 16
        a.i("v_add_u32 %s, 16, %s" % (v(a1), v(addr)))
        for k in range(4):
            a.i("ds_read2st64_b32 %s, %s offset0:%d offset1:%d" % (v(tmp + 2 * k, 2), v(addr), 8 * k, 8 * k + 4))
        for k in range(4):
            a.i("ds_read2st64_b32 %s, %s offset0:%d offset1:%d" % (v(tmp + 8 + 2 * k, 2), v(a1), 8 * k, 8 * k + 4))
        a.i("s_waitcnt lgkmcnt(0)")
        for base, out in ((tmp, out0), (tmp + 8, out1)):
            a.i("v_add_f32 %s, %s, %s" % (v(base), v(base), v(base + 1)))
            a.i("v_add_f32 %s, %s, %s" % (v(base + 2), v(base + 2), v(base + 3)))
            a.i("v_add_f32 %s, %s, %s" % (v(base + 4), v(base + 4), v(base + 5)))
            a.i("v_add_f32 %s, %s, %s" % (v(base + 6), v(base + 6), v(base + 7)))
            a.i("v_add_f32 %s, %s, %s" % (v(base), v(base), v(base + 2)))
            a.i("v_add_f32 %s, %s, %s" % (v(base + 4), v(base + 4), v(base + 6)))
            a.i("v_add_f32 %s, %s, %s" % (v(out), v(base), v(base + 4)))

    def publish(self, data4, voff, soff="s%d" % sAREA):
        a = self.a
        a.i("v_mov_b32 %s, s%d" % (v(data4 + 2), sT0))
        a.i("v_mov_b32 %s, s%d" % (v(data4 + 3), sT1))
        a.i("buffer_store_dwordx4 %s, %s, %s, %s offen sc0 sc1" % (v(data4, 4), v(voff), srd(SRD_WS), soff))

    def redpub(self, redbase_sgpr, wsoff_sgpr):
        a = self.a
        addr = vt
        a.i("v_add_u32 %s, s%d, %s" % (v(addr), redbase_sgpr, v(vREDR)))
        self.reduce8(addr, vU + 8, vU + 9, vU + 12)
        a.i("v_lshlrev_b32 %s, 4, %s" % (v(vt + 1), v(vL)))
        a.i("v_add_u32 %s, s%d, %s" % (v(vt + 1), wsoff_sgpr, v(vt + 1)))
        self.publish(vU + 8, vt + 1)

    def tagcheck(self, regs, okpair):
        a = self.a
        first = True
        for r in regs:
            for k, t in ((2, sT0), (3, sT1)):
                a.i("v_cmp_eq_u32 vcc, s%d, %s" % (t, v(r + k)))
                if first:
                    a.nop(1)
                    a.i("s_mov_b64 %s, vcc" % s(okpair, 2))
                    first = False
                else:
                    a.nop(1)
                    a.i("s_and_b64 %s, %s, vcc" % (s(okpair, 2), s(okpair, 2)))

    def gather_loads(self, specs):
        a = self.a
        for dst, voff, m in specs:
            if isinstance(m, int):
                a.i("s_add_u32 s%d, s%d, %d" % (sT + 6, sGRP, m * self.AREA))
            else:
                a.i("s_add_u32 s%d, s%d, s%d" % (sT + 6, sGRP, m[0]))
            a.i("buffer_load_dwordx4 %s, %s, %s, s%d offen sc1" % (v(dst, 4), v(voff), srd(SRD_WS), sT + 6))
            self.vm.issue("gather")

    def spin_until_tags(self, specs, regs):
        a = self.a
        top = self.lab("chk")
        done = self.lab("ok")
        a.i("s_mov_b32 s%d, %d" % (sSPIN, self.spin))
        a.label(top)
        self.tagcheck(regs, sOK)
        a.i("s_cmp_eq_u64 %s, -1" % s(sOK, 2))
        a.i("s_cbranch_scc1 %s" % done)
        a.i("s_sub_u32 s%d, s%d, 1" % (sSPIN, sSPIN))
        a.i("s_cbranch_scc1 %s" % done)
        if self.sleep:
            a.i("s_sleep %d" % self.sleep)
        save = self.vm.state()
        self.gather_loads(specs)
        self.vm.q = save
        a.i("s_waitcnt vmcnt(0)")
        a.i("s_branch %s" % top)
        a.label(done)

    def ring_issue(self, m):
        a = self.a
        n = m & 15
        isV = (m >> 4) & 1
        so = sVO if isV else sKO
        if (n & 3) == 0:
            a.i("s_add_u32 s%d, s%d, %d" % (so, so, 8 * self.G * 1024))
        a.i("buffer_load_dwordx4 %s, %s, %s, s%d offen offset:%d nt"
            % (v(vR + 4 * n, 4), v(vRING), srd(SRD_V if isV else SRD_K), so, (n & 3) * 1024))
        self.vm.issue(("item", m))

    def k_item(self, n):
        a = self.a
        r = vR + 4 * n
        a.i("v_dot2_f32_bf16 %s, %s, %s, 0" % (v(vP + n), v(r), v(vQ)))
        for d in range(1, 4):
            a.i("v_dot2_f32_bf16 %s, %s, %s, %s" % (v(vP + n), v(r + d), v(vQ + d), v(vP + n)))

    def softmax(self):
        a = self.a
        P = vP
        a.nop(3)
        for n in range(8):
            a.i("v_add_f32_dpp %s, %s, %s row_ror:8 row_mask:0xf bank_mask:0x3" % (v(P + n), v(P + n), v(P + n)))
        for n in range(8):
            a.i("v_add_f32_dpp %s, %s, %s row_ror:8 row_mask:0xf bank_mask:0xc" % (v(P + n), v(P + n + 8), v(P + n + 8)))
        for n in range(4):
            a.i("v_add_f32_dpp %s, %s, %s row_ror:12 row_mask:0xf bank_mask:0x5" % (v(P + n), v(P + n), v(P + n)))
        for n in range(4):
            a.i("v_add_f32_dpp %s, %s, %s row_ror:4 row_mask:0xf bank_mask:0xa" % (v(P + n), v(P + n + 4), v(P + n + 4)))
        for n in range(4):
            a.i("v_add_f32_dpp %s, %s, %s quad_perm:[2,3,0,1] row_mask:0xf bank_mask:0xf" % (v(P + 8 + n), v(P + n), v(P + n)))
        a.i("v_cndmask_b32_e64 %s, %s, %s, %s" % (v(P + 0), v(P + 8), v(P + 10), s(self.sBIT1, 2)))
        a.i("v_cndmask_b32_e64 %s, %s, %s, %s" % (v(P + 1), v(P + 9), v(P + 11), s(self.sBIT1, 2)))
        a.nop(1)
        a.i("v_add_f32_dpp %s, %s, %s quad_perm:[1,0,3,2] row_mask:0xf bank_mask:0xf" % (v(P + 8), v(P + 0), v(P + 0)))
        a.i("v_add_f32_dpp %s, %s, %s quad_perm:[1,0,3,2] row_mask:0xf bank_mask:0xf" % (v(P + 9), v(P + 1), v(P + 1)))
        S = vt
        a.i("v_cndmask_b32_e64 %s, %s, %s, %s" % (v(S), v(P + 8), v(P + 9), s(self.sBIT0, 2)))
        self.bf16r(S, S)
        a.i("v_mul_f32 %s, 0x%x, %s" % (v(S), SCALE, v(S)))
        self.bf16r(S, S)
        MB = vt + 1
        a.i("v_mov_b32 %s, %s" % (v(MB), v(S)))
        self.allreduce("max", MB, vt + 2)
        a.i("v_max_f32 %s, %s, %s" % (v(MB), v(MB), v(vM)))
        AL = vt + 2
        a.i("v_sub_f32 %s, %s, %s" % (v(AL), v(vM), v(MB)))
        a.i("v_sub_f32 %s, %s, %s" % (v(S), v(S), v(MB)))
        a.i("v_mul_f32 %s, 0x%x, %s" % (v(AL), LOG2E, v(AL)))
        a.i("v_mul_f32 %s, 0x%x, %s" % (v(S), LOG2E, v(S)))
        a.i("v_exp_f32 %s, %s" % (v(AL), v(AL)))
        a.i("v_exp_f32 %s, %s" % (v(S), v(S)))
        a.i("v_mov_b32 %s, %s" % (v(vM), v(MB)))
        a.i("v_cvt_pk_bf16_f32 %s, %s, %s" % (v(vPP), v(S), v(S)))
        a.i("v_fma_f32 %s, %s, %s, %s" % (v(vLS), v(vLS), v(AL), v(S)))
        for d in range(4):
            a.i("v_mul_f32 %s, %s, %s" % (v(vACC + d), v(AL), v(vACC + d)))
        self.v_bprep(0)

    def v_bprep(self, n):
        a = self.a
        B = vB0 if (n & 1) == 0 else vB1
        for d in range(4):
            a.i("v_and_b32_dpp %s, %s, %s row_newbcast:%d row_mask:0xf bank_mask:0xf" % (v(B + d), v(vPP), v(vMASK + d), n))

    def v_item(self, n):
        a = self.a
        if n < 15:
            self.v_bprep(n + 1)
        else:
            a.nop(2)
        B = vB0 if (n & 1) == 0 else vB1
        a.i("v_mfma_f32_16x16x32_bf16 %s, %s, %s, %s" % (v(vACC, 4), v(vR + 4 * n, 4), v(B, 4), v(vACC, 4)))

    def block(self, m0, issue_fn, hooks=None):
        a = self.a
        hooks = hooks or {}
        for j in range(32):
            m = m0 + j
            self.vm.wait(("item", m))
            issue_fn(m)
            if j < 16:
                self.k_item(j)
                if j == 15:
                    self.softmax()
            else:
                self.v_item(j - 16)
            if j in hooks:
                hooks[j]()

    def build(self):
        a = self.a
        vm = self.vm
        P1, P2, D = self.P1, self.P2, self.D
        AREA = self.AREA
        self.sBIT0, self.sBIT1 = 94, 96
        a(HEADER.rstrip("\n"))
        a("; @launch grid=(256,1,1) block=(512,1,1) lds=%d" % LDS_BYTES)
        a('.amdgcn_target "amdgcn-amd-amdhsa--gfx950"')
        a(".text")
        a(".globl %s_kernel" % NAME)
        a(".p2align 8")
        a(".type %s_kernel,@function" % NAME)
        a.label("%s_kernel" % NAME)
        a.i("s_cmp_ge_u32 s2, 256")
        a.i("s_cbranch_scc1 L_END")
        a.i("s_load_dwordx16 s[%d:%d], s[0:1], 0" % (sX0, sX0 + 15))
        a.i("s_load_dwordx8 s[%d:%d], s[0:1], 64" % (sX0 + 16, sX0 + 23))
        if self.diag:
            a.i("v_mov_b32 %s, 0" % v(vU + 31))
            self.stamp(0)
        a.c("ids")
        a.i("v_lshrrev_b32 %s, 6, %s" % (v(vt), v(vTID)))
        a.i("v_and_b32 %s, 63, %s" % (v(vL), v(vTID)))
        a.i("v_readfirstlane_b32 s%d, %s" % (sW, v(vt)))
        a.i("s_lshr_b32 s%d, s2, 3" % sG)
        a.i("s_and_b32 s%d, s2, 7" % sS)
        a.i("s_and_b32 s%d, s2, 1" % sB_)
        a.i("s_lshr_b32 s%d, s%d, 1" % (sQT, sS))
        a.c("lane constants")
        c = vt + 1
        gq = vt + 2
        a.i("v_and_b32 %s, 15, %s" % (v(c), v(vL)))
        a.i("v_lshrrev_b32 %s, 4, %s" % (v(gq), v(vL)))
        a.i("s_mul_i32 s%d, s%d, %d" % (sT, sW, self.G * 1024))
        a.i("v_lshlrev_b32 %s, 4, %s" % (v(vRING), v(vL)))
        a.i("v_add_u32 %s, s%d, %s" % (v(vRING), sT, v(vRING)))
        a.i("s_lshl_b32 s%d, s%d, 4" % (sT, sW))
        a.i("v_add_u32 %s, s%d, %s" % (v(vt + 3), sT, v(gq)))
        a.i("v_lshlrev_b32 %s, 4, %s" % (v(vt + 4), v(c)))
        a.i("v_lshlrev_b32 %s, 13, %s" % (v(vT8), v(vt + 3)))
        a.i("v_add_u32 %s, %s, %s" % (v(vT8), v(vT8), v(vt + 4)))
        a.i("v_mul_u32_u24 %s, 7168, %s" % (v(vT7), v(vt + 3)))
        a.i("v_add_u32 %s, %s, %s" % (v(vT7), v(vT7), v(vt + 4)))
        a.i("v_lshlrev_b32 %s, 11, %s" % (v(vT2), v(vt + 3)))
        a.i("v_add_u32 %s, %s, %s" % (v(vT2), v(vT2), v(vt + 4)))
        XST, XSL = vt + 5, vt + 6
        a.i("v_lshlrev_b32 %s, 3, %s" % (v(XST), v(vTID)))
        a.i("v_and_b32 %s, 127, %s" % (v(vt + 7), v(vTID)))
        a.i("v_lshlrev_b32 %s, 1, %s" % (v(XSL), v(vt + 7)))
        a.i("v_lshrrev_b32 %s, 7, %s" % (v(vt + 8), v(vTID)))
        a.i("v_and_b32 %s, 1, %s" % (v(vt + 8), v(vt + 8)))
        a.i("v_lshlrev_b32 %s, 11, %s" % (v(vt + 9), v(vt + 8)))
        a.i("v_add_u32 %s, %s, %s" % (v(XSL), v(XSL), v(vt + 9)))
        XF = vt + 10
        a.i("v_and_b32 %s, 3, %s" % (v(XF), v(vTID)))
        a.i("v_lshlrev_b32 %s, 2, %s" % (v(XF), v(XF)))
        a.i("s_lshl_b32 s%d, s2, 4" % (sT))
        a.i("v_add_u32 %s, s%d, %s" % (v(XF), sT, v(XF)))
        a.c("descriptor words 2,3")
        for n, size in ((SRD_X, 4096), (SRD_K, 1 << 28), (SRD_V, 1 << 28), (SRD_WQ, 8 << 20), (SRD_WO, 8 << 20),
                        (SRD_OUT, 4096), (SRD_WS, self.ws_bytes + (65536 if self.diag else 0)), (SRD_DBG, 256)):
            a.i("s_mov_b32 s%d, 0x%x" % (n + 2, size))
            a.i("s_mov_b32 s%d, 0x20000" % (n + 3))
        a.i("s_cmp_lt_u32 s%d, 28" % sG)
        for n in (SRD_WG, SRD_WU, SRD_WD):
            a.i("s_cselect_b32 s%d, 0x%x, 0" % (n + 2, 7 << 20))
            a.i("s_mov_b32 s%d, 0x20000" % (n + 3))
        a.c("scalar offsets")
        a.i("s_lshl_b32 s%d, s%d, 5" % (sT, sB_))
        a.i("s_add_u32 s%d, s%d, s%d" % (sT, sT, sG))
        a.i("s_lshl_b32 s%d, s%d, 2" % (sT, sT))
        a.i("s_add_u32 s%d, s%d, s%d" % (sT, sT, sQT))
        a.i("s_lshl_b32 s%d, s%d, 20" % (sT, sT))
        a.i("s_sub_u32 s%d, s%d, %d" % (sKO, sT, 8 * self.G * 1024))
        a.i("s_mov_b32 s%d, s%d" % (sVO, sKO))
        a.i("s_mul_i32 s%d, s2, %d" % (sAREA, AREA))
        a.i("s_add_u32 s%d, s%d, %d" % (sAREA, sAREA, WS_HDR))
        a.i("s_mul_i32 s%d, s%d, %d" % (sGRP, sG, 8 * AREA))
        a.i("s_add_u32 s%d, s%d, %d" % (sGRP, sGRP, WS_HDR))
        sOQ, sOG, sOO = sT + 1, sT + 2, 67
        a.i("s_lshl_b32 s%d, s%d, 8" % (sT, sG))
        a.i("s_lshl_b32 s%d, s%d, 20" % (sOQ, sS))
        a.i("s_add_u32 s%d, s%d, s%d" % (sOQ, sOQ, sT))
        a.i("s_mul_i32 s%d, s%d, %d" % (sOG, sS, 128 * 7168))
        a.i("s_add_u32 s%d, s%d, s%d" % (sOG, sOG, sT))
        a.i("s_lshl_b32 s%d, s%d, 18" % (sOO, sG))
        a.i("s_lshl_b32 s%d, s%d, 8" % (sT, sS))
        a.i("s_add_u32 s%d, s%d, s%d" % (sOO, sOO, sT))
        a.i("s_lshl_b32 s%d, s%d, 8" % (sT + 3, sS))
        a.i("s_waitcnt lgkmcnt(0)")
        for n, k in ((SRD_X, 0), (SRD_K, 2), (SRD_V, 4), (SRD_WQ, 6), (SRD_WO, 8), (SRD_WG, 12), (SRD_WU, 14),
                     (SRD_WD, 16), (SRD_OUT, 18), (SRD_DBG, 20), (SRD_WS, 22)):
            a.i("s_mov_b64 s[%d:%d], s[%d:%d]" % (n, n + 1, sX0 + k, sX0 + k + 1))
        a.c("first loads")
        XA = vU + 16
        XB = vU + 18
        a.i("buffer_load_dwordx2 %s, %s, %s, 0 offen" % (v(XA, 2), v(XST), srd(SRD_X)))
        vm.issue("xst")
        a.i("buffer_load_ushort %s, %s, %s, s%d offen" % (v(XB), v(XSL), srd(SRD_X), sT + 3))
        vm.issue("xsl")
        self.tile_loads(vTQ, SRD_WQ, vT8, 8192, sOQ, "tq")
        self.tile_loads(vTG, SRD_WG, vT7, 7168, sOG, "tg")
        self.tile_loads(vTU, SRD_WU, vT7, 7168, sOG, "tu")
        for m in range(P1):
            self.ring_issue(m)
        a.i("buffer_load_dword %s, %s, %s, 0 offen" % (v(vXFIN), v(XF), srd(SRD_X)))
        vm.issue("xfin")
        a.c("epoch -> tag")
        a.i("s_load_dwordx2 s[%d:%d], s[%d:%d], 0" % (sT0, sT1, SRD_WS, SRD_WS + 1))
        a.c("more lane constants (while loads fly)")
        a.i("v_and_b32 %s, 1, %s" % (v(vt + 11), v(vL)))
        a.i("v_lshlrev_b32 %s, 4, %s" % (v(vt + 11), v(vt + 11)))
        a.i("v_mov_b32 %s, 0xffff" % v(vt + 12))
        a.i("v_lshlrev_b32 %s, %s, %s" % (v(vt + 11), v(vt + 11), v(vt + 12)))
        a.i("v_bfe_u32 %s, %s, 1, 2" % (v(vt + 12), v(vL)))
        for d in range(4):
            a.i("v_cmp_eq_u32 vcc, %d, %s" % (d, v(vt + 12)))
            a.nop(2)
            a.i("v_cndmask_b32 %s, 0, %s, vcc" % (v(vMASK + d), v(vt + 11)))
        a.i("s_mov_b32 s%d, 0xaaaaaaaa" % self.sBIT0)
        a.i("s_mov_b32 s%d, 0xaaaaaaaa" % (self.sBIT0 + 1))
        a.i("s_mov_b32 s%d, 0xcccccccc" % self.sBIT1)
        a.i("s_mov_b32 s%d, 0xcccccccc" % (self.sBIT1 + 1))
        a.i("v_bfe_u32 %s, %s, 3, 1" % (v(vt + 11), v(vL)))
        a.i("v_lshlrev_b32 %s, 5, %s" % (v(vt + 11), v(vt + 11)))
        a.i("v_add_u32 %s, %s, %s" % (v(vt + 11), v(vt + 11), v(gq)))
        a.i("s_lshl_b32 s%d, s%d, 2" % (sT, sW))
        a.i("v_add_u32 %s, s%d, %s" % (v(vt + 11), sT, v(vt + 11)))
        a.i("v_lshlrev_b32 %s, 4, %s" % (v(vXSR), v(vt + 11)))
        a.i("s_lshl_b32 s%d, s%d, 10" % (sT, sW))
        a.i("v_lshlrev_b32 %s, 4, %s" % (v(vREDW), v(vL)))
        a.i("v_add_u32 %s, s%d, %s" % (v(vREDW), sT, v(vREDW)))
        a.i("v_lshlrev_b32 %s, 4, %s" % (v(vt + 11), v(gq)))
        a.i("v_and_b32 %s, 3, %s" % (v(vt + 12), v(vL)))
        a.i("v_lshlrev_b32 %s, 1, %s" % (v(vt + 12), v(vt + 12)))
        a.i("v_add_u32 %s, %s, %s" % (v(vt + 11), v(vt + 11), v(vt + 12)))
        a.i("s_and_b32 s%d, s%d, 1" % (sT, sW))
        a.i("s_lshl_b32 s%d, s%d, 3" % (sT, sT))
        a.i("v_add_u32 %s, s%d, %s" % (v(vt + 11), sT, v(vt + 11)))
        a.i("v_lshlrev_b32 %s, 4, %s" % (v(vt + 11), v(vt + 11)))
        a.i("v_bfe_u32 %s, %s, 2, 2" % (v(vt + 12), v(vL)))
        a.i("v_lshlrev_b32 %s, 2, %s" % (v(vt + 12), v(vt + 12)))
        a.i("v_add_u32 %s, %s, %s" % (v(vREDR), v(vt + 11), v(vt + 12)))
        a.i("v_lshrrev_b32 %s, 3, %s" % (v(vt + 11), v(vL)))
        a.i("v_lshlrev_b32 %s, 2, %s" % (v(vt + 11), v(vt + 11)))
        a.i("v_and_b32 %s, 1, %s" % (v(vt + 12), v(vL)))
        a.i("v_lshlrev_b32 %s, 1, %s" % (v(vt + 12), v(vt + 12)))
        a.i("v_add_u32 %s, %s, %s" % (v(vt + 11), v(vt + 11), v(vt + 12)))
        a.i("v_lshlrev_b32 %s, 2, %s" % (v(vt + 11), v(vt + 11)))
        a.i("v_bfe_u32 %s, %s, 1, 2" % (v(vt + 12), v(vL)))
        a.i("v_add_u32 %s, %s, %s" % (v(vt + 11), v(vt + 11), v(vt + 12)))
        a.i("v_lshlrev_b32 %s, 2, %s" % (v(vXSW), v(vt + 11)))
        XW = vU + 19
        a.i("v_lshlrev_b32 %s, 3, %s" % (v(vt + 11), v(vt + 8)))
        a.i("v_lshrrev_b32 %s, 4, %s" % (v(vt + 12), v(vt + 7)))
        a.i("v_add_u32 %s, %s, %s" % (v(vt + 11), v(vt + 11), v(vt + 12)))
        a.i("v_lshlrev_b32 %s, 2, %s" % (v(vt + 11), v(vt + 11)))
        a.i("v_and_b32 %s, 3, %s" % (v(vt + 12), v(vt + 7)))
        a.i("v_add_u32 %s, %s, %s" % (v(vt + 11), v(vt + 11), v(vt + 12)))
        a.i("v_lshlrev_b32 %s, 2, %s" % (v(vt + 11), v(vt + 11)))
        a.i("v_bfe_u32 %s, %s, 2, 2" % (v(vt + 12), v(vt + 7)))
        a.i("v_add_u32 %s, %s, %s" % (v(vt + 11), v(vt + 11), v(vt + 12)))
        a.i("v_lshlrev_b32 %s, 2, %s" % (v(XW), v(vt + 11)))
        a.i("v_mov_b32 %s, 0xff7fffff" % v(vM))
        a.i("v_mov_b32 %s, 0" % v(vLS))
        for d in range(4):
            a.i("v_mov_b32 %s, 0" % v(vACC + d))

        a.c("layernorm statistics")
        vm.wait("xst")
        F = vU
        a.i("v_lshlrev_b32 %s, 16, %s" % (v(F), v(XA)))
        a.i("v_and_b32 %s, 0xffff0000, %s" % (v(F + 1), v(XA)))
        a.i("v_lshlrev_b32 %s, 16, %s" % (v(F + 2), v(XA + 1)))
        a.i("v_and_b32 %s, 0xffff0000, %s" % (v(F + 3), v(XA + 1)))
        SM = vU + 4
        a.i("v_add_f32 %s, %s, %s" % (v(SM), v(F), v(F + 1)))
        a.i("v_add_f32 %s, %s, %s" % (v(SM + 1), v(F + 2), v(F + 3)))
        a.i("v_add_f32 %s, %s, %s" % (v(SM), v(SM), v(SM + 1)))
        self.allreduce("add", SM, SM + 1)
        a.i("s_lshl_b32 s%d, s%d, 2" % (sT, sW))
        a.i("v_mov_b32 %s, s%d" % (v(SM + 2), sT))
        a.i("ds_write_b32 %s, %s offset:%d" % (v(SM + 2), v(SM), ST1))
        a.i("s_waitcnt lgkmcnt(0)")
        a.i("s_barrier")
        Z = vU + 7
        a.i("v_mov_b32 %s, 0" % v(Z))
        R = vU + 8
        a.i("ds_read_b128 %s, %s offset:%d" % (v(R, 4), v(Z), ST1))
        a.i("ds_read_b128 %s, %s offset:%d" % (v(R + 4, 4), v(Z), ST1 + 16))
        a.i("s_waitcnt lgkmcnt(0)")
        MU0, MU1 = vt + 11, vt + 12
        for base, out in ((R, MU0), (R + 4, MU1)):
            a.i("v_add_f32 %s, %s, %s" % (v(base), v(base), v(base + 1)))
            a.i("v_add_f32 %s, %s, %s" % (v(base + 2), v(base + 2), v(base + 3)))
            a.i("v_add_f32 %s, %s, %s" % (v(base), v(base), v(base + 2)))
            a.i("v_mul_f32 %s, 0x3a800000, %s" % (v(out), v(base)))
        a.i("s_bitcmp1_b32 s%d, 2" % sW)
        a.i("s_cselect_b64 vcc, -1, 0")
        a.i("v_cndmask_b32 %s, %s, %s, vcc" % (v(SM), v(MU0), v(MU1)))
        for k in range(4):
            a.i("v_sub_f32 %s, %s, %s" % (v(F + k), v(F + k), v(SM)))
        a.i("v_mul_f32 %s, %s, %s" % (v(SM), v(F), v(F)))
        for k in range(1, 4):
            a.i("v_fma_f32 %s, %s, %s, %s" % (v(SM), v(F + k), v(F + k), v(SM)))
        self.allreduce("add", SM, SM + 1)
        a.i("ds_write_b32 %s, %s offset:%d" % (v(SM + 2), v(SM), ST2))
        a.i("s_waitcnt lgkmcnt(0)")
        a.i("s_barrier")
        a.i("ds_read_b128 %s, %s offset:%d" % (v(R, 4), v(Z), ST2))
        a.i("ds_read_b128 %s, %s offset:%d" % (v(R + 4, 4), v(Z), ST2 + 16))
        a.i("s_waitcnt lgkmcnt(0)")
        VA0, VA1 = vt + 13, vt + 14
        for base, out in ((R, VA0), (R + 4, VA1)):
            a.i("v_add_f32 %s, %s, %s" % (v(base), v(base), v(base + 1)))
            a.i("v_add_f32 %s, %s, %s" % (v(base + 2), v(base + 2), v(base + 3)))
            a.i("v_add_f32 %s, %s, %s" % (v(base), v(base), v(base + 2)))
            a.i("v_mul_f32 %s, 0x3a800000, %s" % (v(out), v(base)))
        a.i("s_bitcmp1_b32 s%d, 1" % sW)
        a.i("s_cselect_b64 vcc, -1, 0")
        a.i("v_cndmask_b32 %s, %s, %s, vcc" % (v(MU0), v(MU0), v(MU1)))
        a.i("v_cndmask_b32 %s, %s, %s, vcc" % (v(VA0), v(VA0), v(VA1)))
        self.bf16r(MU0, MU0)
        self.bf16r(VA0, VA0)
        a.i("v_add_f32 %s, 0x%x, %s" % (v(VA0), EPS, v(VA0)))
        self.bf16r(VA0, VA0)
        a.i("v_sqrt_f32 %s, %s" % (v(VA0), v(VA0)))
        a.nop(1)
        self.bf16r(VA0, VA0)
        a.i("v_rcp_f32 %s, %s" % (v(VA1), v(VA0)))
        vm.wait("xsl")
        a.i("v_lshlrev_b32 %s, 16, %s" % (v(XB), v(XB)))
        a.i("v_sub_f32 %s, %s, %s" % (v(XB), v(XB), v(MU0)))
        self.bf16r(XB, XB)
        a.i("v_mul_f32 %s, %s, %s" % (v(MU1), v(XB), v(VA1)))
        a.i("v_fma_f32 %s, -%s, %s, %s" % (v(XB), v(MU1), v(VA0), v(XB)))
        a.i("v_fma_f32 %s, %s, %s, %s" % (v(MU1), v(XB), v(VA1), v(MU1)))
        a.i("v_cvt_pk_bf16_f32 %s, %s, %s" % (v(MU1), v(MU1), v(MU1)))
        a.i("ds_write_b32 %s, %s offset:%d" % (v(XW), v(MU1), XS0))
        a.i("s_waitcnt lgkmcnt(0)")
        a.i("s_barrier")
        self.stamp(1)

        a.c("q partial (wq tile)")
        vm.wait("tq")
        self.gemv(vTQ, XS0, RED_A)
        a.i("s_waitcnt lgkmcnt(0)")
        a.i("s_barrier")
        skipA = self.lab("skipA")
        a.i("s_cmp_ge_u32 s%d, 2" % sW)
        a.i("s_cbranch_scc1 %s" % skipA)
        a.i("s_mov_b32 s%d, %d" % (sT, RED_A))
        a.i("s_lshl_b32 s%d, s%d, 10" % (sT + 1, sW))
        a.i("s_add_u32 s%d, s%d, %d" % (sT + 1, sT + 1, A_OFF))
        a.c("tag = epoch + 1")
        a.i("s_add_u32 s%d, s%d, 1" % (sT0, sT0))
        self.redpub(sT, sT + 1)
        self.stamp(2)
        a.i("s_branch %s" % (skipA + "b"))
        a.label(skipA)
        a.i("s_add_u32 s%d, s%d, 1" % (sT0, sT0))
        a.label(skipA + "b")
        a.c("gate/up partials")
        vm.wait("tg")
        self.gemv(vTG, XS0, RED_B)
        vm.wait("tu")
        self.gemv(vTU, XS0, RED_C)
        a.i("s_waitcnt lgkmcnt(0)")
        a.i("s_barrier")
        skipB = self.lab("skipB")
        a.i("s_sub_u32 s%d, s%d, 2" % (sT + 2, sW))
        a.i("s_cmp_ge_u32 s%d, 4" % (sT + 2))
        a.i("s_cbranch_scc1 %s" % skipB)
        a.i("s_cmp_ge_u32 s%d, 28" % sG)
        a.i("s_cbranch_scc1 %s" % skipB)
        a.i("s_cmp_ge_u32 s%d, 2" % (sT + 2))
        a.i("s_cselect_b32 s%d, %d, 0" % (sT, RED_C - RED_B))
        a.i("s_add_u32 s%d, s%d, %d" % (sT, sT, RED_B))
        a.i("s_lshl_b32 s%d, s%d, 10" % (sT + 1, sT + 2))
        a.i("s_add_u32 s%d, s%d, %d" % (sT + 1, sT + 1, B_OFF))
        self.redpub(sT, sT + 1)
        a.label(skipB)

        a.c("drain, then gather q partials (wave 0) and gate/up partials (waves 4..7)")
        vm.wait_all()
        self.stamp(3)
        VG = vt
        a.i("v_mov_b32 %s, 0x7ff00000" % v(VG))
        notA = self.lab("notA")
        gdone = self.lab("gdone")
        a.i("s_cmp_lg_u32 s%d, 0" % sW)
        a.i("s_cbranch_scc1 %s" % notA)
        a.i("s_lshl_b32 s%d, s%d, 10" % (sT, sB_))
        a.i("s_add_u32 s%d, s%d, %d" % (sT, sT, A_OFF))
        a.i("v_lshlrev_b32 %s, 4, %s" % (v(VG), v(vL)))
        a.i("v_add_u32 %s, s%d, %s" % (v(VG), sT, v(VG)))
        a.i("s_branch %s" % gdone)
        a.label(notA)
        a.i("s_cmp_lt_u32 s%d, 4" % sW)
        a.i("s_cbranch_scc1 %s" % gdone)
        a.i("s_cmp_ge_u32 s%d, 28" % sG)
        a.i("s_cbranch_scc1 %s" % gdone)
        a.i("s_bfe_u32 s%d, s%d, 0x10001" % (sT, sW))
        a.i("s_lshl_b32 s%d, s%d, 10" % (sT, sT))
        a.i("s_and_b32 s%d, s%d, 1" % (sT + 1, sW))
        a.i("s_lshl_b32 s%d, s%d, 9" % (sT + 1, sT + 1))
        a.i("s_add_u32 s%d, s%d, s%d" % (sT, sT, sT + 1))
        a.i("s_add_u32 s%d, s%d, %d" % (sT, sT, B_OFF))
        a.i("v_and_b32 %s, 31, %s" % (v(VG), v(vL)))
        a.i("v_lshlrev_b32 %s, 4, %s" % (v(VG), v(VG)))
        a.i("v_lshrrev_b32 %s, 5, %s" % (v(VG + 1), v(vL)))
        a.i("v_lshlrev_b32 %s, 11, %s" % (v(VG + 1), v(VG + 1)))
        a.i("v_add_u32 %s, %s, %s" % (v(VG), v(VG), v(VG + 1)))
        a.i("v_add_u32 %s, s%d, %s" % (v(VG), sT, v(VG)))
        a.label(gdone)
        VGK = vU + 20
        a.i("v_mov_b32 %s, %s" % (v(VGK), v(VG)))
        specs8 = [(vG + 4 * m, VGK, m) for m in range(8)]
        self.gather_loads(specs8)
        for m in range(P1, P1 + P2):
            self.ring_issue(m)
        regs8 = [vG + 4 * m for m in range(8)]
        noq = self.lab("noq")
        a.i("s_cmp_lg_u32 s%d, 0" % sW)
        a.i("s_cbranch_scc1 %s" % noq)
        st = vm.state()
        vm.wait("gather")
        self.spin_until_tags(specs8, regs8)
        self.sum8(vU + 8, vU + 9)
        a.i("v_cvt_pk_bf16_f32 %s, %s, %s" % (v(vU + 8), v(vU + 8), v(vU + 9)))
        a.i("v_lshlrev_b32 %s, 2, %s" % (v(vU + 9), v(vL)))
        a.i("ds_write_b32 %s, %s offset:%d" % (v(vU + 9), v(vU + 8), QL))
        a.i("s_waitcnt lgkmcnt(0)")
        vm.q = st
        a.label(noq)
        a.i("s_barrier")
        a.i("v_and_b32 %s, 15, %s" % (v(vt), v(vL)))
        a.i("v_lshlrev_b32 %s, 4, %s" % (v(vt), v(vt)))
        a.i("ds_read_b128 %s, %s offset:%d" % (v(vQ, 4), v(vt), QL))
        self.stamp(4)
        noh = self.lab("noh")
        a.i("s_cmp_lt_u32 s%d, 4" % sW)
        a.i("s_cbranch_scc1 %s" % noh)
        a.i("s_cmp_ge_u32 s%d, 28" % sG)
        a.i("s_cbranch_scc1 %s" % noh)
        st = vm.state()
        vm.wait("gather")
        self.spin_until_tags(specs8, regs8)
        self.sum8(vU + 8, vU + 9)
        self.bf16r(vU + 8, vU + 8)
        self.bf16r(vU + 9, vU + 9)
        a.i("v_mov_b32 %s, %s" % (v(vU + 10), v(vU + 8)))
        a.i("v_mov_b32 %s, %s" % (v(vU + 11), v(vU + 9)))
        a.nop(2)
        a.i("v_permlane32_swap_b32 %s, %s" % (v(vU + 8), v(vU + 10)))
        a.i("v_permlane32_swap_b32 %s, %s" % (v(vU + 9), v(vU + 11)))
        a.nop(1)
        for k in range(2):
            self.silu(vU + 8 + k, vU + 12)
            self.bf16r(vU + 8 + k, vU + 8 + k)
            a.i("v_mul_f32 %s, %s, %s" % (v(vU + 8 + k), v(vU + 8 + k), v(vU + 10 + k)))
            a.i("v_cvt_pk_bf16_f32 %s, %s, %s" % (v(vU + 8 + k), v(vU + 8 + k), v(vU + 8 + k)))
        a.i("v_and_b32 %s, 31, %s" % (v(vU + 12), v(vL)))
        a.i("v_lshrrev_b32 %s, 3, %s" % (v(vU + 13), v(vU + 12)))
        a.i("v_lshlrev_b32 %s, 2, %s" % (v(vU + 13), v(vU + 13)))
        a.i("v_and_b32 %s, 1, %s" % (v(vU + 14), v(vU + 12)))
        a.i("v_lshlrev_b32 %s, 1, %s" % (v(vU + 14), v(vU + 14)))
        a.i("v_add_u32 %s, %s, %s" % (v(vU + 13), v(vU + 13), v(vU + 14)))
        a.i("v_lshlrev_b32 %s, 2, %s" % (v(vU + 13), v(vU + 13)))
        a.i("v_bfe_u32 %s, %s, 1, 2" % (v(vU + 14), v(vU + 12)))
        a.i("v_add_u32 %s, %s, %s" % (v(vU + 13), v(vU + 13), v(vU + 14)))
        a.i("v_lshlrev_b32 %s, 2, %s" % (v(vU + 13), v(vU + 13)))
        a.i("s_bfe_u32 s%d, s%d, 0x10001" % (sT, sW))
        a.i("s_lshl_b32 s%d, s%d, 9" % (sT, sT))
        a.i("s_and_b32 s%d, s%d, 1" % (sT + 1, sW))
        a.i("s_lshl_b32 s%d, s%d, 8" % (sT + 1, sT + 1))
        a.i("s_add_u32 s%d, s%d, s%d" % (sT, sT, sT + 1))
        a.i("s_add_u32 s%d, s%d, %d" % (sT, sT, XS1))
        a.i("v_add_u32 %s, s%d, %s" % (v(vU + 13), sT, v(vU + 13)))
        a.i("ds_write2_b32 %s, %s, %s offset0:0 offset1:4" % (v(vU + 13), v(vU + 8), v(vU + 9)))
        vm.q = st
        a.label(noh)
        a.i("s_waitcnt lgkmcnt(0)")
        vm.q = [t for t in vm.q if t != "gather"]
        issued = P1 + P2

        state = {"next": issued}

        def issue_first(m):
            if m + D >= state["next"]:
                self.ring_issue(state["next"])
                state["next"] += 1

        a.c("block 0 (peeled)")
        self.block(0, issue_first)
        assert state["next"] == 32 + D, (state["next"], D)
        st_entry = [(t[0], t[1] - 32) for t in vm.state()]
        a.c("blocks 1..6")
        a.i("s_mov_b32 s%d, 6" % sCNT)
        a.label("L_LOOP")
        self.block(32, lambda m: self.ring_issue(m + D))
        st_exit = [(t[0], t[1] - 64) for t in vm.state()]
        assert st_entry == st_exit, (st_entry, st_exit)
        a.i("s_sub_u32 s%d, s%d, 1" % (sCNT, sCNT))
        a.i("s_cmp_lg_u32 s%d, 0" % sCNT)
        a.i("s_cbranch_scc1 L_LOOP")
        vm.q = [(t[0], t[1] - 64 + 224) for t in vm.q]
        a.c("block 7 (peeled): weight tiles for the tail are fetched behind the last V items")
        vTO, vTD = vTQ, vTG

        def issue_last(m):
            if m + D < 256:
                self.ring_issue(m + D)
            if m - 224 - 16 == self.tile_at:
                self.tile_loads(vTO, SRD_WO, vT2, 2048, sOO, "to")
                self.tile_loads(vTD, SRD_WD, vT2, 2048, sOO, "td")

        self.block(224, issue_last)
        self.stamp(5)

        a.c("T1: workgroup partial")
        self.allreduce("add", vLS, vt)
        a.nop(4)
        a.i("ds_write_b128 %s, %s offset:%d" % (v(vREDW), v(vACC, 4), RED_A))
        a.i("s_lshl_b32 s%d, s%d, 3" % (sT, sW))
        a.i("v_mov_b32 %s, s%d" % (v(vt), sT))
        a.i("v_mov_b32 %s, %s" % (v(vt + 2), v(vM)))
        a.i("v_mov_b32 %s, %s" % (v(vt + 3), v(vLS)))
        a.i("ds_write_b64 %s, %s offset:%d" % (v(vt), v(vt + 2, 2), MLL))
        a.i("s_waitcnt lgkmcnt(0)")
        a.i("s_barrier")
        not0 = self.lab("t1skip")
        a.i("s_cmp_lg_u32 s%d, 0" % sW)
        a.i("s_cbranch_scc1 %s" % not0)
        a.i("v_mov_b32 %s, 0" % v(vt))
        ML = vG
        for k in range(4):
            a.i("ds_read_b128 %s, %s offset:%d" % (v(ML + 4 * k, 4), v(vt), MLL + 16 * k))
        a.i("v_add_u32 %s, %d, %s" % (v(vt + 1), RED_A, v(vREDR)))
        a.i("v_add_u32 %s, 16, %s" % (v(vt + 2), v(vt + 1)))
        O0, O1 = vU, vU + 8
        for k in range(4):
            a.i("ds_read2st64_b32 %s, %s offset0:%d offset1:%d" % (v(O0 + 2 * k, 2), v(vt + 1), 8 * k, 8 * k + 4))
        for k in range(4):
            a.i("ds_read2st64_b32 %s, %s offset0:%d offset1:%d" % (v(O1 + 2 * k, 2), v(vt + 2), 8 * k, 8 * k + 4))
        a.i("s_waitcnt lgkmcnt(8)")
        MX = vt + 3
        a.i("v_max3_f32 %s, %s, %s, %s" % (v(MX), v(ML), v(ML + 2), v(ML + 4)))
        a.i("v_max3_f32 %s, %s, %s, %s" % (v(MX), v(MX), v(ML + 6), v(ML + 8)))
        a.i("v_max3_f32 %s, %s, %s, %s" % (v(MX), v(MX), v(ML + 10), v(ML + 12)))
        a.i("v_max_f32 %s, %s, %s" % (v(MX), v(MX), v(ML + 14)))
        for k in range(8):
            a.i("v_sub_f32 %s, %s, %s" % (v(ML + 2 * k), v(ML + 2 * k), v(MX)))
        for k in range(8):
            a.i("v_mul_f32 %s, 0x%x, %s" % (v(ML + 2 * k), LOG2E, v(ML + 2 * k)))
        for k in range(8):
            a.i("v_exp_f32 %s, %s" % (v(ML + 2 * k), v(ML + 2 * k)))
        a.i("s_waitcnt lgkmcnt(0)")
        OUTG = vU + 16
        LT = vt + 4
        a.i("v_mul_f32 %s, %s, %s" % (v(OUTG), v(ML), v(O0)))
        a.i("v_mul_f32 %s, %s, %s" % (v(OUTG + 1), v(ML), v(O1)))
        a.i("v_mul_f32 %s, %s, %s" % (v(LT), v(ML), v(ML + 1)))
        for k in range(1, 8):
            a.i("v_fma_f32 %s, %s, %s, %s" % (v(OUTG), v(ML + 2 * k), v(O0 + k), v(OUTG)))
            a.i("v_fma_f32 %s, %s, %s, %s" % (v(OUTG + 1), v(ML + 2 * k), v(O1 + k), v(OUTG + 1)))
            a.i("v_fma_f32 %s, %s, %s, %s" % (v(LT), v(ML + 2 * k), v(ML + 2 * k + 1), v(LT)))
        a.i("v_lshlrev_b32 %s, 4, %s" % (v(vt + 5), v(vL)))
        a.i("v_add_u32 %s, %d, %s" % (v(vt + 5), C_OFF, v(vt + 5)))
        self.publish(OUTG, vt + 5)
        G2 = vU + 20
        a.i("v_mov_b32 %s, %s" % (v(G2), v(MX)))
        a.i("v_mov_b32 %s, %s" % (v(G2 + 1), v(LT)))
        a.i("v_mov_b32 %s, %d" % (v(vt + 6), C_OFF + 1024))
        a.i("s_mov_b64 exec, 1")
        self.publish(G2, vt + 6)
        a.i("s_mov_b64 exec, -1")
        self.stamp(6)
        a.label(not0)

        a.c("T2: gather the 4 key quarters of batch w (waves 0,1)")
        t2skip = self.lab("t2skip")
        a.i("s_cmp_ge_u32 s%d, 2" % sW)
        a.i("s_cbranch_scc1 %s" % t2skip)
        VD, VML = vt + 7, vt + 8
        a.i("v_lshlrev_b32 %s, 4, %s" % (v(VD), v(vL)))
        a.i("v_add_u32 %s, %d, %s" % (v(VD), C_OFF, v(VD)))
        a.i("v_mov_b32 %s, %d" % (v(VML), C_OFF + 1024))
        for q in range(4):
            a.i("s_add_u32 s%d, s%d, %d" % (70 + q, sW, 2 * q))
            a.i("s_mul_i32 s%d, s%d, %d" % (70 + q, 70 + q, AREA))
        specs = [(vG + 4 * q, VD, (70 + q,)) for q in range(4)] + [(vG + 16 + 4 * q, VML, (70 + q,)) for q in range(4)]
        st = vm.state()
        self.gather_loads(specs)
        vm.wait_all()
        self.spin_until_tags(specs, [x[0] for x in specs])
        MX = vt
        MLb = vG + 16
        a.i("v_max3_f32 %s, %s, %s, %s" % (v(MX), v(MLb), v(MLb + 4), v(MLb + 8)))
        a.i("v_max_f32 %s, %s, %s" % (v(MX), v(MX), v(MLb + 12)))
        for q in range(4):
            a.i("v_sub_f32 %s, %s, %s" % (v(MLb + 4 * q), v(MLb + 4 * q), v(MX)))
        for q in range(4):
            a.i("v_mul_f32 %s, 0x%x, %s" % (v(MLb + 4 * q), LOG2E, v(MLb + 4 * q)))
        for q in range(4):
            a.i("v_exp_f32 %s, %s" % (v(MLb + 4 * q), v(MLb + 4 * q)))
        a.nop(1)
        LT = vt + 1
        a.i("v_mul_f32 %s, %s, %s" % (v(LT), v(MLb), v(MLb + 1)))
        a.i("v_mul_f32 %s, %s, %s" % (v(vt + 2), v(MLb), v(vG)))
        a.i("v_mul_f32 %s, %s, %s" % (v(vt + 3), v(MLb), v(vG + 1)))
        for q in range(1, 4):
            a.i("v_fma_f32 %s, %s, %s, %s" % (v(LT), v(MLb + 4 * q), v(MLb + 4 * q + 1), v(LT)))
            a.i("v_fma_f32 %s, %s, %s, %s" % (v(vt + 2), v(MLb + 4 * q), v(vG + 4 * q), v(vt + 2)))
            a.i("v_fma_f32 %s, %s, %s, %s" % (v(vt + 3), v(MLb + 4 * q), v(vG + 4 * q + 1), v(vt + 3)))
        a.i("v_rcp_f32 %s, %s" % (v(LT), v(LT)))
        a.nop(1)
        a.i("v_mul_f32 %s, %s, %s" % (v(vt + 2), v(vt + 2), v(LT)))
        a.i("v_mul_f32 %s, %s, %s" % (v(vt + 3), v(vt + 3), v(LT)))
        a.i("v_cvt_pk_bf16_f32 %s, %s, %s" % (v(vt + 2), v(vt + 2), v(vt + 2)))
        a.i("v_cvt_pk_bf16_f32 %s, %s, %s" % (v(vt + 3), v(vt + 3), v(vt + 3)))
        a.i("s_lshl_b32 s%d, s%d, 9" % (sT, sW))
        a.i("s_add_u32 s%d, s%d, %d" % (sT, sT, XS2))
        a.i("v_add_u32 %s, s%d, %s" % (v(vt + 4), sT, v(vXSW)))
        a.i("ds_write2_b32 %s, %s, %s offset0:0 offset1:4" % (v(vt + 4), v(vt + 2), v(vt + 3)))
        self.stamp(7)
        vm.q = st
        a.label(t2skip)
        a.i("s_waitcnt lgkmcnt(0)")
        a.i("s_barrier")

        a.c("T3: output projection and FFN down tiles")
        vm.wait_all()
        self.gemv(vTO, XS2, RED_A)
        self.gemv(vTD, XS1, RED_B)
        a.i("s_waitcnt lgkmcnt(0)")
        a.i("s_barrier")
        a.i("s_cmp_ge_u32 s%d, 4" % sW)
        a.i("s_cbranch_scc1 L_END")
        t3skip = self.lab("t3skip")
        a.i("s_cmp_ge_u32 s%d, 2" % sW)
        a.i("s_cselect_b32 s%d, %d, 0" % (sT, RED_B - RED_A))
        a.i("s_cselect_b32 s%d, %d, 0" % (sT + 1, DF_OFF - DW_OFF))
        a.i("s_cselect_b32 s%d, 28, 32" % (sT + 3))
        a.i("s_add_u32 s%d, s%d, %d" % (sT, sT, RED_A))
        a.i("s_add_u32 s%d, s%d, %d" % (sT + 1, sT + 1, DW_OFF))
        a.i("s_cmp_ge_u32 s%d, s%d" % (sG, sT + 3))
        a.i("s_cbranch_scc1 %s" % t3skip)
        a.i("s_and_b32 s%d, s%d, 1" % (sT + 2, sW))
        a.i("s_lshl_b32 s%d, s%d, 10" % (sT + 2, sT + 2))
        a.i("s_add_u32 s%d, s%d, s%d" % (sT + 1, sT + 1, sT + 2))
        self.redpub(sT, sT + 1)
        a.label(t3skip)
        self.stamp(8)

        a.c("T4: gather 32 head partials + 28 ffn partials for 8 outputs")
        K = vt
        a.i("v_lshrrev_b32 %s, 2, %s" % (v(K), v(vTID)))
        a.i("v_cmp_gt_u32 vcc, 32, %s" % v(K))
        a.i("v_subrev_u32 %s, 32, %s" % (v(vt + 1), v(K)))
        a.nop(1)
        a.i("v_cndmask_b32 %s, %s, %s, vcc" % (v(vt + 1), v(vt + 1), v(K)))
        a.i("v_mov_b32 %s, %d" % (v(vt + 2), DF_OFF))
        a.i("v_mov_b32 %s, %d" % (v(vt + 3), DW_OFF))
        a.i("v_cndmask_b32 %s, %s, %s, vcc" % (v(vt + 2), v(vt + 2), v(vt + 3)))
        a.i("s_bfe_u32 s%d, s2, 0x30004" % sT)
        a.i("v_lshlrev_b32 %s, 3, %s" % (v(vt + 1), v(vt + 1)))
        a.i("v_add_u32 %s, s%d, %s" % (v(vt + 1), sT, v(vt + 1)))
        a.i("s_mov_b32 s%d, %d" % (sT + 1, AREA))
        a.i("v_mul_lo_u32 %s, %s, s%d" % (v(vt + 1), v(vt + 1), sT + 1))
        a.i("v_add_u32 %s, %s, %s" % (v(vt + 1), v(vt + 1), v(vt + 2)))
        a.i("s_lshr_b32 s%d, s2, 7" % sT)
        a.i("s_lshl_b32 s%d, s%d, 10" % (sT, sT))
        a.i("s_and_b32 s%d, s2, 15" % (sT + 1))
        a.i("s_lshl_b32 s%d, s%d, 6" % (sT + 1, sT + 1))
        a.i("s_add_u32 s%d, s%d, s%d" % (sT, sT, sT + 1))
        a.i("s_add_u32 s%d, s%d, %d" % (sT, sT, WS_HDR))
        a.i("v_and_b32 %s, 3, %s" % (v(vt + 2), v(vTID)))
        a.i("v_lshlrev_b32 %s, 4, %s" % (v(vt + 2), v(vt + 2)))
        a.i("v_add_u32 %s, %s, %s" % (v(vt + 1), v(vt + 1), v(vt + 2)))
        a.i("v_add_u32 %s, s%d, %s" % (v(vt + 1), sT, v(vt + 1)))
        a.i("v_cmp_gt_u32 vcc, 60, %s" % v(K))
        a.i("v_mov_b32 %s, 0x7ff00000" % v(vt + 2))
        a.nop(1)
        a.i("v_cndmask_b32 %s, %s, %s, vcc" % (v(vt + 1), v(vt + 2), v(vt + 1)))
        a.i("s_not_b64 %s, vcc" % s(74, 2))
        top = self.lab("t4")
        done = self.lab("t4ok")
        a.i("s_mov_b32 s%d, %d" % (sSPIN, self.spin))
        F4 = vG
        a.label(top)
        a.i("buffer_load_dwordx4 %s, %s, %s, 0 offen sc1" % (v(F4, 4), v(vt + 1), srd(SRD_WS)))
        a.i("s_waitcnt vmcnt(0)")
        self.tagcheck([F4], sOK)
        a.i("s_or_b64 %s, %s, %s" % (s(sOK, 2), s(sOK, 2), s(74, 2)))
        a.i("s_cmp_eq_u64 %s, -1" % s(sOK, 2))
        a.i("s_cbranch_scc1 %s" % done)
        a.i("s_sub_u32 s%d, s%d, 1" % (sSPIN, sSPIN))
        a.i("s_cbranch_scc1 %s" % done)
        if self.sleep:
            a.i("s_sleep %d" % self.sleep)
        a.i("s_branch %s" % top)
        a.label(done)
        self.stamp(9)
        for r in (F4, F4 + 1):
            a.nop(2)
            a.i("v_add_f32_dpp %s, %s, %s row_ror:4 row_mask:0xf bank_mask:0xf" % (v(r), v(r), v(r)))
        for r in (F4, F4 + 1):
            a.nop(2)
            a.i("v_add_f32_dpp %s, %s, %s row_ror:8 row_mask:0xf bank_mask:0xf" % (v(r), v(r), v(r)))
        for sw in ("16", "32"):
            for r in (F4, F4 + 1):
                a.i("v_mov_b32 %s, %s" % (v(vt + 4), v(r)))
                a.nop(2)
                a.i("v_permlane%s_swap_b32 %s, %s" % (sw, v(r), v(vt + 4)))
                a.nop(1)
                a.i("v_add_f32 %s, %s, %s" % (v(r), v(r), v(vt + 4)))
        a.i("s_lshl_b32 s%d, s%d, 5" % (sT, sW))
        a.i("v_lshlrev_b32 %s, 3, %s" % (v(vt + 4), v(vL)))
        a.i("v_add_u32 %s, s%d, %s" % (v(vt + 4), sT, v(vt + 4)))
        a.i("s_mov_b64 exec, 15")
        a.i("ds_write_b64 %s, %s offset:%d" % (v(vt + 4), v(F4, 2), FIN))
        a.i("s_mov_b64 exec, -1")
        a.i("s_waitcnt lgkmcnt(0)")
        a.i("s_barrier")
        a.i("s_cmp_lg_u32 s%d, 0" % sW)
        a.i("s_cbranch_scc1 L_END")
        a.i("s_mov_b64 exec, 15")
        a.i("v_lshlrev_b32 %s, 3, %s" % (v(vt + 4), v(vL)))
        for w in range(4):
            a.i("ds_read_b64 %s, %s offset:%d" % (v(vU + 2 * w, 2), v(vt + 4), FIN + 32 * w))
        a.i("s_waitcnt lgkmcnt(0)")
        S0, S1, F0, F1 = vU + 8, vU + 9, vU + 10, vU + 11
        a.i("v_add_f32 %s, %s, %s" % (v(S0), v(vU), v(vU + 2)))
        a.i("v_add_f32 %s, %s, %s" % (v(S1), v(vU + 1), v(vU + 3)))
        a.i("v_add_f32 %s, %s, %s" % (v(F0), v(vU + 4), v(vU + 6)))
        a.i("v_add_f32 %s, %s, %s" % (v(F1), v(vU + 5), v(vU + 7)))
        X0, X1 = vU + 12, vU + 13
        a.i("v_lshlrev_b32 %s, 16, %s" % (v(X0), v(vXFIN)))
        a.i("v_and_b32 %s, 0xffff0000, %s" % (v(X1), v(vXFIN)))
        for S_, F_, X_ in ((S0, F0, X0), (S1, F1, X1)):
            self.bf16r(S_, S_)
            self.bf16r(F_, F_)
            self.silu(F_, vU + 14)
            self.bf16r(F_, F_)
            a.i("v_mul_f32 %s, %s, %s" % (v(S_), v(S_), v(F_)))
            self.bf16r(S_, S_)
            a.i("v_add_f32 %s, %s, %s" % (v(S_), v(S_), v(X_)))
        a.i("v_cvt_pk_bf16_f32 %s, %s, %s" % (v(S0), v(S0), v(S1)))
        a.i("v_lshlrev_b32 %s, 2, %s" % (v(vt + 4), v(vL)))
        a.i("s_lshl_b32 s%d, s2, 4" % sT)
        a.i("buffer_store_dword %s, %s, %s, s%d offen" % (v(S0), v(vt + 4), srd(SRD_OUT), sT))
        a.c("workgroup 0 advances the epoch: every workgroup has read it by now")
        a.i("s_cmp_lg_u32 s2, 0")
        noep = self.lab("noep")
        a.i("s_cbranch_scc1 %s" % noep)
        a.i("s_mov_b64 exec, 1")
        a.i("v_mov_b32 %s, s%d" % (v(vU + 16), sT0))
        a.i("v_mov_b32 %s, s%d" % (v(vU + 17), sT1))
        a.i("v_mov_b32 %s, 0" % v(vU + 18))
        a.i("buffer_store_dwordx2 %s, %s, %s, 0 offen sc0 sc1" % (v(vU + 16, 2), v(vU + 18), srd(SRD_WS)))
        a.label(noep)
        if self.diag:
            a.i("s_mov_b64 exec, -1")
            self.stamp(10)
            a.i("s_mov_b64 exec, 0xffff")
            a.i("v_mov_b32 %s, %s" % (v(vU + 20), v(vU + 31)))
            a.i("v_lshlrev_b32 %s, 2, %s" % (v(vU + 21), v(vL)))
            a.i("s_lshl_b32 s%d, s2, 6" % sT)
            a.i("s_add_u32 s%d, s%d, %d" % (sT, sT, self.ws_bytes))
            a.i("buffer_store_dword %s, %s, %s, s%d offen" % (v(vU + 20), v(vU + 21), srd(SRD_WS), sT))
        a.label("L_END")
        a.i("s_endpgm")
        a(".section .rodata,\"a\"")
        a(".p2align 6")
        a(".amdhsa_kernel %s_kernel" % NAME)
        a("  .amdhsa_next_free_vgpr %d" % 256)
        a("  .amdhsa_next_free_sgpr 102")
        a("  .amdhsa_accum_offset 256")
        a("  .amdhsa_group_segment_fixed_size 0")
        a("  .amdhsa_kernarg_size 96")
        a("  .amdhsa_user_sgpr_count 2")
        a("  .amdhsa_user_sgpr_kernarg_segment_ptr 1")
        a("  .amdhsa_system_sgpr_workgroup_id_x 1")
        a("  .amdhsa_float_denorm_mode_32 3")
        a(".end_amdhsa_kernel")
        return a.text()

    def sum8(self, o0, o1):
        a = self.a
        for k, o in ((0, o0), (1, o1)):
            a.i("v_add_f32 %s, %s, %s" % (v(vG + k), v(vG + k), v(vG + 4 + k)))
            a.i("v_add_f32 %s, %s, %s" % (v(vG + 8 + k), v(vG + 8 + k), v(vG + 12 + k)))
            a.i("v_add_f32 %s, %s, %s" % (v(vG + 16 + k), v(vG + 16 + k), v(vG + 20 + k)))
            a.i("v_add_f32 %s, %s, %s" % (v(vG + 24 + k), v(vG + 24 + k), v(vG + 28 + k)))
            a.i("v_add_f32 %s, %s, %s" % (v(vG + k), v(vG + k), v(vG + 8 + k)))
            a.i("v_add_f32 %s, %s, %s" % (v(vG + 16 + k), v(vG + 16 + k), v(vG + 24 + k)))
            a.i("v_add_f32 %s, %s, %s" % (v(o), v(vG + k), v(vG + 16 + k)))

    def silu(self, r, t):
        a = self.a
        a.i("v_mul_f32 %s, 0x%x, %s" % (v(t), LOG2E ^ 0x80000000, v(r)))
        a.i("v_exp_f32 %s, %s" % (v(t), v(t)))
        a.nop(1)
        a.i("v_add_f32 %s, 1.0, %s" % (v(t), v(t)))
        a.i("v_rcp_f32 %s, %s" % (v(t), v(t)))
        a.nop(1)
        a.i("v_mul_f32 %s, %s, %s" % (v(r), v(r), v(t)))


def main():
    ap = argparse.ArgumentParser()
    ap.add_argument("-o", default="cdna_kernels/%s.s" % NAME)
    ap.add_argument("--P1", type=int, default=3)
    ap.add_argument("--P2", type=int, default=3)
    ap.add_argument("--D", type=int, default=3)
    ap.add_argument("--G", type=int, default=4)
    ap.add_argument("--AREA", type=int, default=16384 + 512)
    ap.add_argument("--sleep", type=int, default=2)
    ap.add_argument("--tile_at", type=int, default=13)
    ap.add_argument("--diag", action="store_true")
    args = ap.parse_args()
    g = Gen(P1=args.P1, P2=args.P2, D=args.D, G=args.G, AREA=args.AREA, diag=args.diag, sleep=args.sleep,
            tile_at=args.tile_at)
    txt = g.build()
    probs = check_hazards(txt.split("\n"))
    for p in probs:
        print("HAZARD:", p, file=sys.stderr)
    open(args.o, "w").write(txt)
    print("wrote", args.o, len(txt), "bytes;", len(probs), "hazards")


if __name__ == "__main__":
    main()
```
